```python
import torch

def _softmax(x, axis=-1):
    return torch.softmax(x, dim=axis)
def _gelu(x):
    return torch.nn.functional.gelu(x, approximate="tanh")
def _silu(x):
    return torch.nn.functional.silu(x)
def _sigmoid(x):
    return torch.sigmoid(x)
def _layernorm(x, axis=-1, eps=1e-5):
    m = x.mean(dim=axis, keepdim=True)
    v = x.var(dim=axis, keepdim=True, unbiased=False)
    return (x - m) / torch.sqrt(v + eps)
def _scatter_add(tgt, idx, src, axis=0):
    return tgt.clone().index_add_(axis, idx, src)
def _segment_sum(src, seg, n):
    out = torch.zeros((n,) + src.shape[1:], dtype=src.dtype)
    return out.index_add_(0, seg, src)
def _pad(x, pw):
    flat = tuple(v for pair in reversed(pw) for v in pair)
    return torch.nn.functional.pad(x, flat)

kernel_name = 'parallel_sum__mha_block_cached__geglu_ffn__decode'

def setup_inputs():

    _w = (lambda a: (lambda t: t.to(torch.bfloat16) if t.is_floating_point() else t)(torch.as_tensor(a)))
    def _A_setup():
        B, Sq, D = 2, 1, 576
        H, Sk, Dh = 32, 8192, 128
        return {
            "x": _w((lambda *s: torch.randn(*s, dtype=torch.bfloat16) * 0.05)(B, Sq, D)),
            "k_cache": _w((lambda *s: torch.randn(*s, dtype=torch.bfloat16) * 3.2)(B, H, Sk, Dh)),
            "v_cache": _w((lambda *s: torch.randn(*s, dtype=torch.bfloat16) * 1.6)(B, H, Sk, Dh)),
            "wq": _w((lambda *s: torch.randn(*s, dtype=torch.bfloat16) * 3.2)(D, H * Dh) * (D ** -0.5)),
            "wo": _w((lambda *s: torch.randn(*s, dtype=torch.bfloat16) * 1.6)(H * Dh, D) * ((H * Dh) ** -0.5)),
        }
    _A_in = _A_setup()

    def _B_setup():
        B, S, D, F = 2, 1, 576, 4608
        return {
            "x": _w((lambda *s: torch.randn(*s, dtype=torch.bfloat16) * 0.05)(B, S, D)),
            "w_gate": _w((lambda *s: torch.randn(*s, dtype=torch.bfloat16) * 0.05)(D, F)),
            "w_up": _w((lambda *s: torch.randn(*s, dtype=torch.bfloat16) * 0.05)(D, F)),
            "w_down": _w((lambda *s: torch.randn(*s, dtype=torch.bfloat16) * 0.05)(F, D)),
        }
    _B_in = _B_setup()

    return {
        "A_x": _A_in["x"],
        "A_k_cache": _A_in["k_cache"],
        "A_v_cache": _A_in["v_cache"],
        "A_wq": _A_in["wq"],
        "A_wo": _A_in["wo"],
        "B_x": _B_in["x"],
        "B_w_gate": _B_in["w_gate"],
        "B_w_up": _B_in["w_up"],
        "B_w_down": _B_in["w_down"],
    }

def reference(A_x, A_k_cache, A_v_cache, A_wq, A_wo, B_x, B_w_gate, B_w_up, B_w_down):
    def _A_ref(x, k_cache, v_cache, wq, wo):
        B, Sq, D = x.shape
        H, Dh = 32, 128
        q = (lambda x, *d: x.permute(*d))((x @ wq).reshape(B, Sq, H, Dh), 0, 2, 1, 3)
        scores = torch.einsum("bhqd,bhkd->bhqk", q, k_cache) * (Dh ** -0.5)
        p = _softmax(scores, axis=-1)
        o = torch.einsum("bhqk,bhkd->bhqd", p, v_cache)
        return (lambda x, *d: x.permute(*d))(o, 0, 2, 1, 3).reshape(B, Sq, H * Dh) @ wo

    def _B_ref(x, w_gate, w_up, w_down):
        return (_gelu(x @ w_gate) * (x @ w_up)) @ w_down

    x = A_x
    xn = _layernorm(x, axis=-1)
    return x + _A_ref(xn, A_k_cache, A_v_cache, A_wq, A_wo) + _B_ref(xn, B_w_gate, B_w_up, B_w_down)
```

```python
import sys, struct

KN = "parallel_sum__mha_block_cached__geglu_ffn__decode_kernel"
LOG2E = 1.4426950408889634
SCALE = 128 ** -0.5


def f32(x):
    return "0x%08x" % struct.unpack("<I", struct.pack("<f", x))[0]


WS_EPOCH = 0
WS_QP = 0x1000
WS_OP = 0x100000
WS_HM = 0x180000
WS_YP = 0x200000
WS_SIZE = 0x300000
STAMP_OFF = 0x10000000

L_CNT = 0
L_TAG = 8
L_Q = 64
L_XN = 512
L_F = 5120
L_WP = 7168
L_Z = 11392
L_R = 13952
L_YW = 18048
LDS_SIZE = 50816

POLL_LIMIT = 40000


def gen(stamps=False, xcd_local=False, C=3, early_w=False, prio=True, codewarm=False):
    L = []
    e = L.append

    def nop(n):
        while n > 0:
            k = min(n, 16)
            e(f"s_nop {k-1}")
            n -= k

    NVGPR = 168
    e(f"; @launch grid=(256,1,1) block=(576,1,1) lds={LDS_SIZE}")
    e('.amdgcn_target "amdgcn-amd-amdhsa--gfx950"')
    e(".text")
    e(f".globl {KN}")
    e(".p2align 8")
    e(f".type {KN},@function")
    e(f"{KN}:")
    sX, sK, sV, sWQ, sWO, sWG, sWU, sWD, sOUT, sDBG, sWS = 4, 6, 8, 10, 12, 16, 18, 20, 22, 24, 26
    rK, rV, rWS, rA, rB, rC, rD = 28, 32, 36, 40, 44, 48, 52
    sH, sJ, sB, sSP, sWAVE, sAW, sT32, sT8, sSLOT = 60, 61, 62, 63, 64, 65, 66, 67, 68
    sTMO = 69
    sTK = [70, 71, 72, 73]
    t0, t1, t2, t3, t4, t5 = 74, 75, 76, 77, 78, 79
    sOFF = 80
    sEH = 81
    sDD = 82
    rST = 88
    sSTM = 92

    def stamp(idx):
        if not stamps:
            return
        e(f"s_memrealtime s[{sSTM}:{sSTM+1}]")
        e("s_waitcnt lgkmcnt(0)")
        e(f"v_mov_b32 v60, s{sSTM}")
        e(f"v_mov_b32 v61, s{sSTM+1}")
        e(f"v_mov_b32 v62, {idx*8}")
        e(f"s_mov_b64 s[{sSTM+2}:{sSTM+3}], exec")
        e("s_mov_b64 exec, 1")
        e(f"buffer_store_dwordx2 v[60:61], v62, s[{rST}:{rST+3}], 0 offen")
        e(f"s_mov_b64 exec, s[{sSTM+2}:{sSTM+3}]")
        nop(2)

    def srd(r, base, off_s, nrec):
        if off_s is None:
            e(f"s_mov_b32 s{r}, s{base}")
            e(f"s_mov_b32 s{r+1}, s{base+1}")
        else:
            e(f"s_add_u32 s{r}, s{base}, {off_s}")
            e(f"s_addc_u32 s{r+1}, s{base+1}, 0")
        e(f"s_mov_b32 s{r+2}, {nrec}")
        e(f"s_mov_b32 s{r+3}, 0x20000")

    def swapred(op, a, b, which):
        e(f"v_mov_b32 v{b}, v{a}")
        nop(2)
        e(f"v_permlane{which}_swap_b32 v{a}, v{b}")
        e(f"{op} v{a}, v{a}, v{b}")

    def dppred(op, a, ror):
        nop(2)
        e(f"{op}_dpp v{a}, v{a}, v{a} row_ror:{ror} row_mask:0xf bank_mask:0xf")

    e("s_cmp_ge_u32 s2, 256")
    e("s_cbranch_scc1 L_end")
    e("s_load_dwordx16 s[4:19], s[0:1], 0")
    e("s_load_dwordx8 s[20:27], s[0:1], 64")
    e("v_lshrrev_b32 v1, 6, v0")
    e("v_and_b32 v0, 63, v0")
    e("s_nop 0")
    e(f"v_readfirstlane_b32 s{sWAVE}, v1")
    if xcd_local:
        e(f"s_and_b32 s{t0}, s2, 7"); e(f"s_lshl_b32 s{t0}, s{t0}, 2")
        e(f"s_lshr_b32 s{t1}, s2, 3"); e(f"s_and_b32 s{t1}, s{t1}, 3")
        e(f"s_add_u32 s{sH}, s{t0}, s{t1}")
        e(f"s_lshr_b32 s{sJ}, s2, 5")
    else:
        e(f"s_lshr_b32 s{sH}, s2, 3")
        e(f"s_and_b32 s{sJ}, s2, 7")
    e(f"s_lshr_b32 s{sB}, s{sJ}, 2")
    e(f"s_and_b32 s{sSP}, s{sJ}, 3")
    e(f"s_lshl_b32 s{sSLOT}, s{sH}, 3")
    e(f"s_add_u32 s{sSLOT}, s{sSLOT}, s{sJ}")
    e("v_lshrrev_b32 v1, 4, v0")
    e("v_and_b32 v2, 15, v0")
    e("s_waitcnt lgkmcnt(0)")
    srd(rWS, sWS, None, WS_SIZE)
    if stamps:
        e(f"s_lshl_b32 s{t0}, s2, 6"); e(f"s_add_u32 s{t0}, s{t0}, {STAMP_OFF}")
        srd(rST, sWS, f"s{t0}", 64)
    e(f"s_cmp_eq_u32 s{sWAVE}, 0")
    e("s_cbranch_scc0 L_attn")

    if prio:
        e("s_setprio 3")
    stamp(0)
    XD = 8
    EP = 18
    WQ = 64
    srd(rA, sX, None, 2304)
    e("v_mul_u32_u24 v3, 36, v0")
    e("v_mov_b32 v4, 0")
    e(f"buffer_load_dwordx2 v[{EP}:{EP+1}], v4, s[{rWS}:{rWS+3}], 0 offen sc1")
    e(f"buffer_load_dwordx4 v[{XD}:{XD+3}], v3, s[{rA}:{rA+3}], 0 offen")
    e(f"buffer_load_dwordx4 v[{XD+4}:{XD+7}], v3, s[{rA}:{rA+3}], 0 offen offset:16")
    e(f"buffer_load_dword v{XD+8}, v3, s[{rA}:{rA+3}], 0 offen offset:32")
    e(f"s_mul_i32 s{t0}, s{sJ}, {72*8192}")
    e(f"s_lshl_b32 s{t1}, s{sH}, 8")
    e(f"s_add_u32 s{t0}, s{t0}, s{t1}")
    srd(rB, sWQ, f"s{t0}", 71 * 8192 + 256)
    e(f"v_mul_u32_u24 v5, {18*8192}, v1")
    e("v_lshl_add_u32 v5, v2, 4, v5")
    e(f"s_mov_b32 s{sOFF}, 0")
    for t in range(18):
        e(f"buffer_load_dwordx4 v[{WQ+4*t}:{WQ+4*t+3}], v5, s[{rB}:{rB+3}], s{sOFF} offen nt")
        if t < 17:
            e(f"s_add_u32 s{sOFF}, s{sOFF}, 8192")
    e(f"v_mov_b32 v6, {8*C}")
    e(f"ds_write_b32 v4, v6 offset:{L_CNT}")
    e("s_waitcnt lgkmcnt(0)")
    e("s_barrier")
    e("v_and_b32 v6, 1, v0")
    e("v_mov_b32 v7, 0xffff")
    e("v_mov_b32 v26, 0xffff0000")
    e("v_cmp_eq_u32 vcc, 1, v6")
    nop(2)
    e("v_cndmask_b32 v7, v7, v26, vcc")
    e("v_bfe_u32 v6, v0, 1, 2")
    for jm in range(4):
        e(f"v_cmp_eq_u32 vcc, {jm}, v6")
        nop(2)
        e(f"v_cndmask_b32 v{20+jm}, 0, v7, vcc")
    e("v_bfe_u32 v6, v0, 1, 1")
    for jm in range(2):
        e(f"v_cmp_eq_u32 vcc, {jm}, v6")
        nop(2)
        e(f"v_cndmask_b32 v{24+jm}, 0, v7, vcc")
    XF = 28
    e("s_waitcnt vmcnt(18)")
    e(f"v_readfirstlane_b32 s{t0}, v{EP}")
    e(f"v_readfirstlane_b32 s{t1}, v{EP+1}")
    for d in range(9):
        e(f"v_lshlrev_b32 v{XF+2*d}, 16, v{XD+d}")
        e(f"v_and_b32 v{XF+2*d+1}, 0xffff0000, v{XD+d}")
    e(f"s_mul_i32 s{sT32}, s{t0}, 0x2c9277b5")
    e(f"s_add_u32 s{sT32}, s{sT32}, 0xac564b05")
    e(f"s_mul_i32 s{sEH}, s{t1}, 0x5851f42d")
    e(f"s_add_u32 s{sEH}, s{sEH}, 0x14057b7f")
    e(f"s_and_b32 s{sT8}, s{sEH}, 0xff")
    e(f"v_add_f32 v46, v{XF}, v{XF+1}")
    e(f"v_add_f32 v47, v{XF+2}, v{XF+3}")
    for k in range(4, 18, 2):
        e(f"v_add_f32 v46, v46, v{XF+k}")
        e(f"v_add_f32 v47, v47, v{XF+k+1}")
    e("v_add_f32 v46, v46, v47")
    for r in (8, 4, 2, 1):
        dppred("v_add_f32", 46, r)
    swapred("v_add_f32", 46, 47, 16)
    e(f"v_mul_f32 v46, {f32(1.0/576)}, v46")
    e(f"v_sub_f32 v48, v{XF}, v46")
    e(f"v_sub_f32 v49, v{XF+1}, v46")
    e("v_mul_f32 v50, v48, v48")
    e("v_mul_f32 v51, v49, v49")
    for k in range(2, 18, 2):
        e(f"v_sub_f32 v48, v{XF+k}, v46")
        e(f"v_sub_f32 v49, v{XF+k+1}, v46")
        e("v_fmac_f32 v50, v48, v48")
        e("v_fmac_f32 v51, v49, v49")
    e("v_add_f32 v50, v50, v51")
    for r in (8, 4, 2, 1):
        dppred("v_add_f32", 50, r)
    swapred("v_add_f32", 50, 51, 16)
    e(f"v_mul_f32 v50, {f32(1.0/576)}, v50")
    e("v_cvt_pk_bf16_f32 v47, v46, v50")
    e("v_lshlrev_b32 v46, 16, v47")
    e("v_and_b32 v50, 0xffff0000, v47")
    e(f"v_add_f32 v50, {f32(1e-5)}, v50")
    e("v_cvt_pk_bf16_f32 v50, v50, v50")
    e("v_lshlrev_b32 v50, 16, v50")
    e("v_sqrt_f32 v50, v50")
    nop(1)
    e("v_cvt_pk_bf16_f32 v50, v50, v50")
    e("v_lshlrev_b32 v50, 16, v50")
    e("v_rcp_f32 v51, v50")
    nop(1)
    e("v_fma_f32 v52, -v50, v51, 1.0")
    e("v_fmac_f32 v51, v52, v51")
    e("v_mul_u32_u24 v6, 72, v0")
    for k in range(0, 18, 2):
        a, b2 = XF + k, XF + k + 1
        e(f"v_sub_f32 v{a}, v{a}, v46")
        e(f"v_sub_f32 v{b2}, v{b2}, v46")
        e(f"v_cvt_pk_bf16_f32 v48, v{a}, v{b2}")
        e(f"v_lshlrev_b32 v{a}, 16, v48")
        e(f"v_and_b32 v{b2}, 0xffff0000, v48")
        e(f"v_mul_f32 v{a}, v{a}, v51")
        e(f"v_mul_f32 v{b2}, v{b2}, v51")
        e(f"v_cvt_pk_bf16_f32 v{a}, v{a}, v{a}")
        e(f"v_cvt_pk_bf16_f32 v{b2}, v{b2}, v{b2}")
        e(f"ds_write_b64 v6, v[{a}:{b2}] offset:{L_XN + 4*k}")
    e(f"v_mov_b32 v48, s{sT32}"); e(f"v_mov_b32 v49, s{sT8}"); e(f"v_mov_b32 v52, s{sEH}")
    e(f"ds_write_b64 v4, v[48:49] offset:{L_TAG}")
    e(f"ds_write_b32 v4, v52 offset:{L_TAG+8}")
    e("v_lshrrev_b32 v6, 3, v2")
    e(f"v_mul_u32_u24 v6, {576*4}, v6")
    e("v_mul_u32_u24 v7, 72, v1")
    e("v_add_u32 v6, v6, v7")
    e(f"s_mul_i32 s{t0}, s{sJ}, 288")
    e(f"v_add_u32 v6, s{t0}, v6")
    e("s_waitcnt lgkmcnt(0)")
    for k in range(9):
        e(f"ds_read_b64 v[{XF+2*k}:{XF+2*k+1}], v6 offset:{L_XN + 8*k}")
    e("v_mov_b32 v3, 0xff")
    e(f"v_mov_b32 v27, s{sT32}")
    e("s_waitcnt lgkmcnt(0)")
    QD = 48
    for t in range(18):
        Bs = 52 + 4 * (t & 1)
        for jm in range(4):
            e(f"v_and_b32 v{Bs+jm}, v{XF+t}, v{20+jm}")
        e(f"s_waitcnt vmcnt({17-t})")
        nop(1)
        e(f"v_mfma_f32_16x16x32_bf16 v[{QD}:{QD+3}], v[{WQ+4*t}:{WQ+4*t+3}], v[{Bs}:{Bs+3}], " + ("0" if t == 0 else f"v[{QD}:{QD+3}]"))
    nop(8)
    for r in range(4):
        e(f"v_add_u32 v{QD+r}, 0x80, v{QD+r}")
        e(f"v_bfi_b32 v{52+2*r}, v3, s{sT8}, v{QD+r}")
        e(f"v_mov_b32 v{53+2*r}, v27")
    e("v_lshlrev_b32 v6, 5, v0")
    e(f"s_lshl_b32 s{t0}, s{sSLOT}, 11")
    e(f"s_add_u32 s{t0}, s{t0}, {WS_QP}")
    e(f"buffer_store_dwordx4 v[52:55], v6, s[{rWS}:{rWS+3}], s{t0} offen sc1")
    e(f"buffer_store_dwordx4 v[56:59], v6, s[{rWS}:{rWS+3}], s{t0} offen offset:16 sc1")
    e("v_bfe_u32 v6, v0, 1, 3")
    e("v_lshl_add_u32 v6, v1, 4, v6")
    e(f"s_lshl_b32 s{t0}, s{sB}, 3")
    e(f"v_add_u32 v6, s{t0}, v6")
    e("v_lshlrev_b32 v6, 5, v6")
    e("v_and_b32 v7, 1, v0")
    e("v_lshl_add_u32 v6, v7, 4, v6")
    e(f"s_lshl_b32 s{t0}, s{sH}, 14")
    e(f"s_add_u32 s{t0}, s{t0}, {WS_QP}")
    e(f"s_add_u32 s{t1}, s{t0}, 4096"); e(f"s_add_u32 s{t2}, s{t0}, 8192"); e(f"s_add_u32 s{t3}, s{t0}, 12288")
    e(f"s_mov_b32 s{sTMO}, {POLL_LIMIT}")
    GQ = 64
    e("L_qpoll:")
    for k in range(8):
        so = (t0, t1, t2, t3)[k >> 1]
        e(f"buffer_load_dwordx4 v[{GQ+4*k}:{GQ+4*k+3}], v6, s[{rWS}:{rWS+3}], s{so} offen offset:{(k&1)*2048} sc1")
    e("v_mov_b32 v7, 0")
    e("s_waitcnt vmcnt(0)")
    for k in range(16):
        lo, hi = GQ + 2 * k, GQ + 2 * k + 1
        e(f"v_xor_b32 v26, s{sT8}, v{lo}")
        e(f"v_xor_b32 v46, s{sT32}, v{hi}")
        e(f"v_and_or_b32 v26, v26, v3, v46")
        e(f"v_or_b32 v7, v7, v26")
    e("v_cmp_ne_u32 vcc, 0, v7")
    e("s_cbranch_vccz L_qdone")
    e(f"s_sub_u32 s{sTMO}, s{sTMO}, 1")
    e(f"s_cmp_eq_u32 s{sTMO}, 0")
    e("s_cbranch_scc0 L_qpoll")
    e("L_qdone:")
    e("v_mov_b32 v26, 0xffffff00")
    for k in range(8):
        e(f"v_and_b32 v{GQ+4*k}, v26, v{GQ+4*k}")
        e(f"v_and_b32 v{GQ+4*k+2}, v26, v{GQ+4*k+2}")
    for k in range(1, 8):
        e(f"v_add_f32 v{GQ}, v{GQ}, v{GQ+4*k}")
        e(f"v_add_f32 v{GQ+2}, v{GQ+2}, v{GQ+4*k+2}")
    e(f"v_cvt_pk_bf16_f32 v7, v{GQ}, v{GQ+2}")
    e("v_and_b32 v6, 1, v0")
    e("v_lshlrev_b32 v6, 5, v6")
    e("v_lshl_add_u32 v6, v1, 6, v6")
    e("v_bfe_u32 v26, v0, 1, 3")
    e("v_lshl_add_u32 v6, v26, 1, v6")
    e(f"ds_write_b16 v6, v7 offset:{L_Q}")
    e(f"ds_write_b16_d16_hi v6, v7 offset:{L_Q+16}")
    e("s_waitcnt lgkmcnt(0)")
    e("s_barrier")
    stamp(1)
    if prio:
        e("s_setprio 0")
    e("s_cmp_ge_u32 s2, 72")
    e("s_cbranch_scc1 L_end")
    e(f"s_lshl_b32 s{t0}, s2, 7")
    e(f"s_sub_u32 s{t1}, {576*9216}, s{t0}")
    srd(rA, sWG, f"s{t0}", f"s{t1}")
    srd(rB, sWU, f"s{t0}", f"s{t1}")
    e("v_lshrrev_b32 v6, 3, v2")
    e("v_lshl_add_u32 v6, v1, 1, v6")
    e(f"s_mov_b32 s{t0}, {72*9216}")
    e(f"v_mul_lo_u32 v5, s{t0}, v6")
    e("v_and_b32 v7, 7, v0")
    e("v_lshl_add_u32 v5, v7, 4, v5")
    e("v_mul_u32_u24 v6, 288, v6")
    e("v_bfe_u32 v7, v0, 2, 1")
    e(f"s_movk_i32 s{t2}, 2304")
    e(f"v_mad_u32_u24 v6, v7, s{t2}, v6")
    FR = 64
    NST = 3
    ACC = 28
    for r in range(16):
        e(f"v_mov_b32 v{ACC+r}, 0")

    def ffn_issue(st):
        for kk in range(4):
            e(f"s_cmp_lt_u32 s{sOFF}, {72*9216}")
            e(f"s_cselect_b32 s{t3}, s{sOFF}, 0x40000000")
            r = FR + st * 32 + kk * 8
            e(f"buffer_load_dwordx4 v[{r}:{r+3}], v5, s[{rA}:{rA+3}], s{t3} offen nt")
            e(f"buffer_load_dwordx4 v[{r+4}:{r+7}], v5, s[{rB}:{rB+3}], s{t3} offen nt")
            e(f"s_add_u32 s{sOFF}, s{sOFF}, 9216")
    e(f"s_mov_b32 s{sOFF}, 0")
    for st in range(NST):
        ffn_issue(st)
    e(f"s_mov_b32 s{t4}, 6")
    e("L_ffn:")
    for st in range(NST):
        e(f"ds_read_b128 v[44:47], v6 offset:{L_XN + 16*st}")
        e("s_waitcnt lgkmcnt(0)")
        for kk in range(4):
            Bs = 48 + 2 * (kk & 1)
            r = FR + st * 32 + kk * 8
            e(f"v_and_b32 v{Bs}, v{44+kk}, v24")
            e(f"v_and_b32 v{Bs+1}, v{44+kk}, v25")
            e(f"s_waitcnt vmcnt({8*NST - 2*(kk+1)})")
            nop(1)
            e(f"v_mfma_f32_16x16x16_bf16 v[{ACC}:{ACC+3}], v[{r}:{r+1}], v[{Bs}:{Bs+1}], v[{ACC}:{ACC+3}]")
            e(f"v_mfma_f32_16x16x16_bf16 v[{ACC+4}:{ACC+7}], v[{r+2}:{r+3}], v[{Bs}:{Bs+1}], v[{ACC+4}:{ACC+7}]")
            e(f"v_mfma_f32_16x16x16_bf16 v[{ACC+8}:{ACC+11}], v[{r+4}:{r+5}], v[{Bs}:{Bs+1}], v[{ACC+8}:{ACC+11}]")
            e(f"v_mfma_f32_16x16x16_bf16 v[{ACC+12}:{ACC+15}], v[{r+6}:{r+7}], v[{Bs}:{Bs+1}], v[{ACC+12}:{ACC+15}]")
        ffn_issue(st)
    e(f"v_add_u32 v6, {16*NST}, v6")
    e(f"s_sub_u32 s{t4}, s{t4}, 1")
    e(f"s_cmp_lg_u32 s{t4}, 0")
    e("s_cbranch_scc1 L_ffn")
    e("v_lshrrev_b32 v6, 3, v2")
    e("v_lshlrev_b32 v6, 9, v6")
    e("v_bfe_u32 v7, v0, 2, 1")
    e("v_lshl_add_u32 v6, v7, 8, v6")
    e("v_and_b32 v7, 1, v1")
    e("v_lshl_add_u32 v6, v7, 7, v6")
    e("v_and_b32 v7, 3, v0")
    e("v_lshl_add_u32 v6, v7, 2, v6")
    nop(4)
    e("s_mov_b32 exec_lo, 0x00ff00ff")
    e("s_mov_b32 exec_hi, 0xff00ff00")
    for mat in range(2):
        for hi in range(2):
            for r in range(4):
                e(f"ds_write_b32 v6, v{ACC + mat*8 + hi*4 + r} offset:{L_F + mat*1024 + (8*r + 4*hi)*4}")
    e("s_mov_b64 exec, -1")
    e("v_lshlrev_b32 v6, 3, v0")
    e("s_waitcnt lgkmcnt(0)")
    for mat in range(2):
        for rs in range(2):
            e(f"ds_read_b64 v[{44+mat*4+rs*2}:{45+mat*4+rs*2}], v6 offset:{L_F + mat*1024 + rs*512}")
    e("s_waitcnt lgkmcnt(0)")
    e("v_add_f32 v44, v44, v46"); e("v_add_f32 v45, v45, v47")
    e("v_add_f32 v48, v48, v50"); e("v_add_f32 v49, v49, v51")
    e("v_cvt_pk_bf16_f32 v46, v44, v45")
    e("v_cvt_pk_bf16_f32 v50, v48, v49")
    e("v_lshlrev_b32 v44, 16, v46"); e("v_and_b32 v45, 0xffff0000, v46")
    e("v_lshlrev_b32 v48, 16, v50"); e("v_and_b32 v49, 0xffff0000, v50")
    e(f"s_mov_b32 s{t0}, {f32(0.044715)}")
    cexp = -2.0 * 0.7978845608028654 * LOG2E
    for (g_, tt) in ((44, 46), (45, 47)):
        e(f"v_mul_f32 v{tt}, v{g_}, v{g_}")
        e(f"v_fma_f32 v{tt}, v{tt}, s{t0}, 1.0")
        e(f"v_mul_f32 v{tt}, v{tt}, v{g_}")
        e(f"v_mul_f32 v{tt}, {f32(cexp)}, v{tt}")
        e(f"v_exp_f32 v{tt}, v{tt}")
        nop(1)
        e(f"v_add_f32 v{tt}, 1.0, v{tt}")
        e(f"v_rcp_f32 v{tt}, v{tt}")
        nop(1)
        e(f"v_mul_f32 v{tt}, v{tt}, v{g_}")
    e("v_cvt_pk_bf16_f32 v46, v46, v47")
    e("v_lshlrev_b32 v44, 16, v46"); e("v_and_b32 v45, 0xffff0000, v46")
    e("v_mul_f32 v44, v44, v48"); e("v_mul_f32 v45, v45, v49")
    e("v_cvt_pk_bf16_f32 v46, v44, v45")
    e(f"v_mov_b32 v47, s{sT32}")
    e("v_lshrrev_b32 v6, 5, v0")
    e(f"v_mul_u32_u24 v6, {2304*8}, v6")
    e("v_and_b32 v7, 31, v0")
    e("v_lshl_add_u32 v6, v7, 3, v6")
    e(f"s_lshl_b32 s{t0}, s2, 8")
    e(f"s_add_u32 s{t0}, s{t0}, {WS_HM}")
    e(f"buffer_store_dwordx2 v[46:47], v6, s[{rWS}:{rWS+3}], s{t0} offen sc1")
    stamp(7)
    e("s_branch L_end")

    e("L_attn:")
    e(f"s_sub_u32 s{sAW}, s{sWAVE}, 1")
    e(f"s_lshl_b32 s{t0}, s{sB}, 5"); e(f"s_add_u32 s{t0}, s{t0}, s{sH}")
    e(f"s_lshl_b32 s{t0}, s{t0}, 2"); e(f"s_add_u32 s{t0}, s{t0}, s{sSP}")
    e(f"s_lshl_b32 s{t0}, s{t0}, 19")
    srd(rK, sK, f"s{t0}", 1 << 19)
    srd(rV, sV, f"s{t0}", 1 << 19)
    vOK, vOV = 3, 4
    M0 = 6
    OA = 12
    vM, vMC, vL, vTK, vZ, vONE = 10, 11, 16, 17, 18, 19
    QB = 20
    SD = 36
    T = 40
    BS = 56
    RING = 64
    e(f"v_and_b32 v{vOK}, 3, v0")
    e(f"v_lshlrev_b32 v{vOK}, 2, v{vOK}")
    e(f"v_bfe_u32 v5, v0, 2, 2")
    e(f"v_add_u32 v{vOK}, v{vOK}, v5")
    e(f"v_lshlrev_b32 v{vOK}, 8, v{vOK}")
    e(f"v_lshl_add_u32 v{vOK}, v1, 4, v{vOK}")
    e(f"v_lshlrev_b32 v{vOV}, 4, v0")

    def issueK(s, so):
        for jj in range(4):
            r = RING + 32 * s + 4 * jj
            e(f"buffer_load_dwordx4 v[{r}:{r+3}], v{vOK}, s[{rK}:{rK+3}], {so} offen offset:{64*jj} nt")

    def issueV(s, so):
        for r4 in range(4):
            r = RING + 32 * s + 16 + 4 * r4
            e(f"buffer_load_dwordx4 v[{r}:{r+3}], v{vOV}, s[{rV}:{rV+3}], {so} offen offset:{1024*r4} nt")

    e("s_barrier")
    for s in range(C):
        e(f"s_add_u32 s{sTK[s]}, s{sAW}, {8*s}")
        e(f"s_lshl_b32 s{sOFF}, s{sTK[s]}, 12")
        if s > 0:
            e("s_waitcnt vmcnt(4)")
        issueK(s, f"s{sOFF}")
        if s > 0:
            e("s_waitcnt vmcnt(4)")
        issueV(s, f"s{sOFF}")
        if s == 0:
            e("v_and_b32 v5, 1, v0")
            e(f"v_mov_b32 v{T}, 0xffff")
            e(f"v_mov_b32 v{T+1}, 0xffff0000")
            e("v_cmp_eq_u32 vcc, 1, v5")
            nop(2)
            e(f"v_cndmask_b32 v{T}, v{T}, v{T+1}, vcc")
            e("v_lshrrev_b32 v5, 1, v2")
            for jm in range(4):
                e(f"v_cmp_eq_u32 vcc, {jm}, v5")
                nop(2)
                e(f"v_cndmask_b32 v{M0+jm}, 0, v{T}, vcc")
            for r in range(4):
                e(f"v_mov_b32 v{OA+r}, 0")
            e(f"v_mov_b32 v{vM}, 0xff800000")
            e(f"v_mov_b32 v{vMC}, 0xff800000")
            e(f"v_mov_b32 v{vL}, 0")
            e(f"v_mov_b32 v{vZ}, 0")
            e(f"v_mov_b32 v{vONE}, 1")
            e("v_lshlrev_b32 v5, 4, v1")
    e("s_barrier")
    for jj in range(4):
        e(f"ds_read_b128 v[{QB+4*jj}:{QB+4*jj+3}], v5 offset:{L_Q + 64*jj}")
    e(f"ds_read_b64 v[{T}:{T+1}], v{vZ} offset:{L_TAG}")
    e(f"ds_read_b32 v{T+2}, v{vZ} offset:{L_TAG+8}")

    def grab():
        e("s_mov_b64 exec, 1")
        e(f"ds_add_rtn_u32 v{vTK}, v{vZ}, v{vONE} offset:{L_CNT}")
        e("s_mov_b64 exec, -1")
    grab()
    e("s_waitcnt lgkmcnt(0)")
    e(f"v_readfirstlane_b32 s{sT32}, v{T}")
    e(f"v_readfirstlane_b32 s{sT8}, v{T+1}")
    e(f"v_readfirstlane_b32 s{sEH}, v{T+2}")
    e(f"s_mov_b32 s{t5}, {f32(LOG2E)}")

    def process(s, nK, nV):
        R = RING + 32 * s
        e(f"s_waitcnt vmcnt({nK})")
        for jj in range(4):
            e(f"v_mfma_f32_16x16x32_bf16 v[{SD}:{SD+3}], v[{R+4*jj}:{R+4*jj+3}], v[{QB+4*jj}:{QB+4*jj+3}], " + ("0" if jj == 0 else f"v[{SD}:{SD+3}]"))
        nop(8)
        e(f"v_cvt_pk_bf16_f32 v{T}, v{SD}, v{SD+1}")
        e(f"v_cvt_pk_bf16_f32 v{T+1}, v{SD+2}, v{SD+3}")
        e(f"v_lshlrev_b32 v{T+2}, 16, v{T}"); e(f"v_and_b32 v{T+3}, 0xffff0000, v{T}")
        e(f"v_lshlrev_b32 v{T+4}, 16, v{T+1}"); e(f"v_and_b32 v{T+5}, 0xffff0000, v{T+1}")
        for k in range(4):
            e(f"v_mul_f32 v{T+2+k}, {f32(SCALE)}, v{T+2+k}")
        e(f"v_cvt_pk_bf16_f32 v{T}, v{T+2}, v{T+3}")
        e(f"v_cvt_pk_bf16_f32 v{T+1}, v{T+4}, v{T+5}")
        e(f"v_lshlrev_b32 v{T+2}, 16, v{T}"); e(f"v_and_b32 v{T+3}, 0xffff0000, v{T}")
        e(f"v_lshlrev_b32 v{T+4}, 16, v{T+1}"); e(f"v_and_b32 v{T+5}, 0xffff0000, v{T+1}")
        e(f"v_max3_f32 v{T+6}, v{T+2}, v{T+3}, v{T+4}")
        e(f"v_max3_f32 v{T+6}, v{T+6}, v{T+5}, v{vM}")
        swapred("v_max_f32", T + 6, T + 7, 32)
        swapred("v_max_f32", T + 6, T + 7, 16)
        e(f"v_mov_b32 v{vM}, v{T+6}")
        e(f"v_mul_f32 v{T+7}, s{t5}, v{T+6}")
        e(f"v_sub_f32 v{T+8}, v{vMC}, v{T+7}")
        e(f"v_exp_f32 v{T+8}, v{T+8}")
        for k in range(4):
            e(f"v_fma_f32 v{T+2+k}, v{T+2+k}, s{t5}, -v{T+7}")
        for k in range(4):
            e(f"v_exp_f32 v{T+2+k}, v{T+2+k}")
        e(f"v_mov_b32 v{vMC}, v{T+7}")
        for r in range(4):
            e(f"v_mul_f32 v{OA+r}, v{OA+r}, v{T+8}")
        e(f"v_add_f32 v{T+9}, v{T+2}, v{T+3}")
        e(f"v_add_f32 v{T+10}, v{T+4}, v{T+5}")
        e(f"v_add_f32 v{T+9}, v{T+9}, v{T+10}")
        e(f"v_fma_f32 v{vL}, v{vL}, v{T+8}, v{T+9}")
        for k in range(4):
            e(f"v_cvt_pk_bf16_f32 v{T+2+k}, v{T+2+k}, v{T+2+k}")
        for r4 in range(4):
            Bs = BS + 4 * (r4 & 1)
            for jm in range(4):
                e(f"v_and_b32 v{Bs+jm}, v{T+2+r4}, v{M0+jm}")
            if r4 == 0:
                e(f"s_waitcnt vmcnt({nV})")
                nop(1)
            else:
                nop(2)
            e(f"v_mfma_f32_16x16x32_bf16 v[{OA}:{OA+3}], v[{R+16+4*r4}:{R+16+4*r4+3}], v[{Bs}:{Bs+3}], v[{OA}:{OA+3}]")

    def refill(s):
        e("s_waitcnt lgkmcnt(0)")
        e(f"v_readfirstlane_b32 s{sTK[s]}, v{vTK}")
        grab()
        e(f"s_min_u32 s{t0}, s{sTK[s]}, 128")
        e(f"s_lshl_b32 s{sOFF}, s{t0}, 12")
        issueK(s, f"s{sOFF}")
        issueV(s, f"s{sOFF}")

    WR = 128
    NW_LOADS = 10

    def setup_w():
        e(f"s_lshl_b32 s{t0}, s{sH}, 7"); e(f"s_lshl_b32 s{t1}, s{sAW}, 4"); e(f"s_add_u32 s{t0}, s{t0}, s{t1}")
        e(f"s_mul_i32 s{t0}, s{t0}, 1152")
        e(f"s_lshl_b32 s{t2}, s{sJ}, 7")
        e(f"s_add_u32 s{t0}, s{t0}, s{t2}")
        e(f"s_sub_u32 s{t3}, {16*1152}, s{t2}")
        srd(rA, sWO, f"s{t0}", f"s{t3}")
        e(f"s_mul_i32 s{t0}, s{sH}, 144"); e(f"s_mul_i32 s{t1}, s{sAW}, 18"); e(f"s_add_u32 s{t0}, s{t0}, s{t1}")
        e(f"s_mul_i32 s{t0}, s{t0}, 1152")
        e(f"s_add_u32 s{t0}, s{t0}, s{t2}")
        e(f"s_sub_u32 s{t3}, {18*1152}, s{t2}")
        srd(rB, sWD, f"s{t0}", f"s{t3}")
        e(f"s_and_b32 s{t0}, s{sH}, 7")
        e(f"s_cmp_eq_u32 s{t0}, s{sJ}")
        e(f"s_cselect_b32 s{sDD}, 1, 0")
        e(f"s_sub_u32 s{t4}, 1024, s{t2}")

    def issue_w(vW, tmp):
        e(f"v_lshrrev_b32 v{vW}, 3, v2")
        e(f"v_lshl_add_u32 v{vW}, v1, 1, v{vW}")
        e(f"v_mul_u32_u24 v{vW}, 1152, v{vW}")
        e(f"v_and_b32 v{tmp}, 7, v0")
        e(f"v_lshl_add_u32 v{vW}, v{tmp}, 4, v{vW}")
        e(f"s_lshl_b32 s{t2}, s{sJ}, 7")
        e(f"s_sub_u32 s{t4}, 1024, s{t2}")
        e(f"s_cmp_eq_u32 s{sDD}, 1")
        e(f"s_cselect_b32 s{t4}, s{t4}, 0x40000000")
        for st2 in range(2):
            for k in range(5):
                r = WR + 20 * st2 + 4 * k
                blk = k if k < 2 else k - 2
                rr = rA if k < 2 else rB
                if st2 == 0:
                    e(f"s_mov_b32 s{t0}, {blk*9216}")
                else:
                    e(f"s_add_u32 s{t0}, s{t4}, {blk*9216}")
                e(f"buffer_load_dwordx4 v[{r}:{r+3}], v{vW}, s[{rr}:{rr+3}], s{t0} offen nt")

    setup_w()
    if C == 3:
        process(0, 20, 16); refill(0)
        process(1, 20, 16); refill(1)
        process(2, 20, 16)
        if not early_w:
            issue_w(T + 12, T + 13)
            extra = NW_LOADS
        else:
            extra = 0
        if extra:
            for s in range(2):
                e(f"s_cmp_ge_u32 s{sTK[s]}, 128")
                e("s_cbranch_scc1 L_exit")
                process(s, 12 + extra, 8 + extra)
                refill(s)
    else:
        raise NotImplementedError
    e("L_loop:")
    for s in range(2):
        e(f"s_cmp_ge_u32 s{sTK[s]}, 128")
        e("s_cbranch_scc1 L_exit")
        process(s, 12, 8)
        refill(s)
    e("s_branch L_loop")
    e("L_exit:")
    if early_w:
        issue_w(T + 12, T + 13)
    e(f"s_cmp_lg_u32 s{sAW}, 0")
    e("s_cbranch_scc1 L_ns2")
    stamp(2)
    e("L_ns2:")
    swapred("v_add_f32", vL, T, 32)
    swapred("v_add_f32", vL, T, 16)
    e(f"v_mov_b32 v{T+1}, v{vL}")
    e(f"v_mov_b32 v{T}, v{vM}")
    e(f"s_mul_i32 s{t0}, s{sAW}, 528")
    e(f"v_lshl_add_u32 v5, v1, 5, v2")
    e(f"v_lshlrev_b32 v5, 2, v5")
    e(f"v_add_u32 v5, s{t0}, v5")
    e(f"v_mov_b32 v{T+2}, s{t0}")
    nop(4)
    e("s_mov_b32 exec_lo, 0x00ff00ff")
    e("s_mov_b32 exec_hi, 0x00ff00ff")
    for r in range(4):
        e(f"ds_write_b32 v5, v{OA+r} offset:{L_WP + 32*r}")
    e("s_mov_b64 exec, 1")
    e(f"ds_write_b64 v{T+2}, v[{T}:{T+1}] offset:{L_WP + 512}")
    e("s_mov_b64 exec, -1")
    e("s_waitcnt lgkmcnt(0)")
    e("s_barrier")
    e("v_mov_b32 v3, 0xff")
    e(f"s_cmp_lg_u32 s{sAW}, 0")
    e("s_cbranch_scc1 L_nocomb")
    stamp(3)
    CO = 64
    e("v_lshlrev_b32 v5, 3, v0")
    for k in range(8):
        e(f"ds_read_b64 v[{CO+16+2*k}:{CO+17+2*k}], v{vZ} offset:{L_WP + 528*k + 512}")
    for k in range(8):
        e(f"ds_read_b64 v[{CO+2*k}:{CO+2*k+1}], v5 offset:{L_WP + 528*k}")
    e("s_waitcnt lgkmcnt(8)")
    H = CO + 16
    e(f"v_max3_f32 v{T}, v{H}, v{H+2}, v{H+4}")
    e(f"v_max3_f32 v{T}, v{T}, v{H+6}, v{H+8}")
    e(f"v_max3_f32 v{T}, v{T}, v{H+10}, v{H+12}")
    e(f"v_max_f32 v{T}, v{T}, v{H+14}")
    e(f"v_mul_f32 v{T+1}, s{t5}, v{T}")
    for k in range(8):
        e(f"v_mul_f32 v{H+2*k}, s{t5}, v{H+2*k}")
        e(f"v_sub_f32 v{H+2*k}, v{H+2*k}, v{T+1}")
        e(f"v_exp_f32 v{H+2*k}, v{H+2*k}")
    nop(1)
    e(f"v_mul_f32 v{T+2}, v{H}, v{H+1}")
    for k in range(1, 8):
        e(f"v_fmac_f32 v{T+2}, v{H+2*k}, v{H+2*k+1}")
    e("s_waitcnt lgkmcnt(0)")
    e(f"v_mul_f32 v{T+4}, v{H}, v{CO}")
    e(f"v_mul_f32 v{T+6}, v{H}, v{CO+1}")
    for k in range(1, 8):
        e(f"v_fmac_f32 v{T+4}, v{H+2*k}, v{CO+2*k}")
        e(f"v_fmac_f32 v{T+6}, v{H+2*k}, v{CO+2*k+1}")
    e(f"v_add_u32 v{T+4}, 0x80, v{T+4}"); e(f"v_add_u32 v{T+6}, 0x80, v{T+6}"); e(f"v_add_u32 v{T+2}, 0x80, v{T+2}")
    e(f"v_bfi_b32 v{T+4}, v3, s{sT8}, v{T+4}")
    e(f"v_bfi_b32 v{T+6}, v3, s{sT8}, v{T+6}")
    e(f"v_mov_b32 v{T+5}, s{sT32}"); e(f"v_mov_b32 v{T+7}, s{sT32}")
    e(f"v_bfi_b32 v{T+8}, v3, s{sT8}, v{T}")
    e(f"v_bfi_b32 v{T+10}, v3, s{sT8}, v{T+2}")
    e(f"v_mov_b32 v{T+9}, s{sT32}"); e(f"v_mov_b32 v{T+11}, s{sT32}")
    e(f"s_lshl_b32 s{t0}, s{sSLOT}, 11")
    e(f"s_add_u32 s{t0}, s{t0}, {WS_OP}")
    e("v_lshlrev_b32 v5, 4, v0")
    e(f"buffer_store_dwordx4 v[{T+4}:{T+7}], v5, s[{rWS}:{rWS+3}], s{t0} offen sc1")
    e("s_mov_b64 exec, 1")
    e(f"buffer_store_dwordx4 v[{T+8}:{T+11}], v{vZ}, s[{rWS}:{rWS+3}], s{t0} offen offset:1024 sc1")
    e("s_mov_b64 exec, -1")
    nop(2)
    e("L_nocomb:")
    e("v_lshrrev_b32 v6, 3, v0")
    e("v_lshlrev_b32 v6, 11, v6")
    e("v_and_b32 v5, 7, v0")
    e("v_lshl_add_u32 v5, v5, 4, v6")
    e(f"s_lshl_b32 s{t0}, s{sH}, 14")
    e(f"s_add_u32 s{t0}, s{t0}, {WS_OP}")
    e(f"s_lshl_b32 s{t1}, s{sAW}, 7")
    e(f"s_add_u32 s{t1}, s{t1}, s{t0}")
    e(f"v_mul_u32_u24 v7, {2304*8}, v1")
    e("v_lshl_add_u32 v7, v2, 3, v7")
    e("v_cmp_gt_u32 vcc, 9, v2")
    e(f"v_mov_b32 v8, 0x40000000")
    nop(1)
    e("v_cndmask_b32 v7, v8, v7, vcc")
    e("v_cmp_gt_u32 vcc, 32, v0")
    nop(2)
    e("v_cndmask_b32 v7, v8, v7, vcc")
    e("v_cmp_eq_u32 vcc, v7, v8")
    nop(2)
    e(f"v_cndmask_b32 v9, -1, 0, vcc")
    e(f"s_mul_i32 s{t2}, s{sH}, 72"); e(f"s_mul_i32 s{t3}, s{sAW}, 9"); e(f"s_add_u32 s{t2}, s{t2}, s{t3}")
    e(f"s_lshl_b32 s{t2}, s{t2}, 3"); e(f"s_add_u32 s{t2}, s{t2}, {WS_HM}")
    e(f"s_mov_b32 s{sTMO}, {POLL_LIMIT}")
    G1 = 64
    e("L_h1poll:")
    e(f"buffer_load_dwordx4 v[{G1}:{G1+3}], v5, s[{rWS}:{rWS+3}], s{t1} offen sc1")
    e(f"buffer_load_dwordx4 v[{G1+4}:{G1+7}], v6, s[{rWS}:{rWS+3}], s{t0} offen offset:1024 sc1")
    e(f"buffer_load_dwordx2 v[{G1+8}:{G1+9}], v7, s[{rWS}:{rWS+3}], s{t2} offen sc1")
    e("s_waitcnt vmcnt(0)")
    e(f"v_xor_b32 v{T}, s{sT32}, v{G1+9}")
    e(f"v_and_b32 v{T}, v{T}, v9")
    for k in range(4):
        lo, hi = G1 + 2 * k, G1 + 2 * k + 1
        e(f"v_xor_b32 v{T+1}, s{sT8}, v{lo}")
        e(f"v_xor_b32 v{T+2}, s{sT32}, v{hi}")
        e(f"v_and_or_b32 v{T+1}, v{T+1}, v3, v{T+2}")
        e(f"v_or_b32 v{T}, v{T}, v{T+1}")
    e(f"v_cmp_ne_u32 vcc, 0, v{T}")
    e("s_cbranch_vccz L_h1done")
    e(f"s_sub_u32 s{sTMO}, s{sTMO}, 1")
    e(f"s_cmp_eq_u32 s{sTMO}, 0")
    e("s_cbranch_scc0 L_h1poll")
    e("L_h1done:")
    if stamps:
        e(f"s_cmp_lg_u32 s{sAW}, 0")
        e("s_cbranch_scc1 L_ns4")
        stamp(4)
        e("L_ns4:")
    e(f"v_mov_b32 v{T+15}, 0xffffff00")
    for k in range(4):
        e(f"v_and_b32 v{G1+2*k}, v{T+15}, v{G1+2*k}")
    o0, o1, mm, ll = G1, G1 + 2, G1 + 4, G1 + 6
    e(f"v_mov_b32 v{T}, v{mm}")
    dppred("v_max_f32", T, 8)
    swapred("v_max_f32", T, T + 1, 16)
    e(f"v_mul_f32 v{T}, s{t5}, v{T}")
    e(f"v_mul_f32 v{mm}, s{t5}, v{mm}")
    e(f"v_sub_f32 v{mm}, v{mm}, v{T}")
    e(f"v_exp_f32 v{mm}, v{mm}")
    nop(1)
    e(f"v_mul_f32 v{ll}, v{ll}, v{mm}")
    e(f"v_mul_f32 v{o0}, v{o0}, v{mm}")
    e(f"v_mul_f32 v{o1}, v{o1}, v{mm}")
    nop(1)
    for a in (ll, o0, o1):
        e(f"v_add_f32_dpp v{a}, v{a}, v{a} row_ror:8 row_mask:0xf bank_mask:0xf")
    for i_, a in enumerate((ll, o0, o1)):
        e(f"v_mov_b32 v{T+1+i_}, v{a}")
    nop(2)
    for i_, a in enumerate((ll, o0, o1)):
        e(f"v_permlane16_swap_b32 v{a}, v{T+1+i_}")
    for i_, a in enumerate((ll, o0, o1)):
        e(f"v_add_f32 v{a}, v{a}, v{T+1+i_}")
    e(f"v_rcp_f32 v{ll}, v{ll}")
    nop(1)
    e(f"v_mul_f32 v{o0}, v{o0}, v{ll}")
    e(f"v_mul_f32 v{o1}, v{o1}, v{ll}")
    e(f"v_cvt_pk_bf16_f32 v{T+4}, v{o0}, v{o0}")
    e(f"v_cvt_pk_bf16_f32 v{T+5}, v{o1}, v{o1}")
    e(f"s_mul_i32 s{t0}, s{sAW}, 320")
    e("v_lshrrev_b32 v5, 5, v0")
    e("v_mul_u32_u24 v5, 160, v5")
    e("v_and_b32 v6, 7, v0")
    e("v_lshl_add_u32 v5, v6, 3, v5")
    e(f"v_add_u32 v5, s{t0}, v5")
    e(f"ds_write_b64 v5, v[{T+4}:{T+5}] offset:{L_Z}")
    hm = G1 + 8
    e(f"v_and_b32 v{T+6}, 0xffff, v{hm}")
    e(f"v_lshl_or_b32 v{T+6}, v{hm}, 16, v{T+6}")
    e(f"v_lshrrev_b32 v{T+7}, 16, v{hm}")
    e(f"v_and_b32 v{T+8}, 0xffff0000, v{hm}")
    e(f"v_or_b32 v{T+7}, v{T+7}, v{T+8}")
    e("v_mul_u32_u24 v5, 160, v1")
    e("v_lshl_add_u32 v5, v2, 3, v5")
    e(f"v_add_u32 v5, s{t0}, v5")
    e("s_mov_b32 exec_lo, 0x0fff0fff")
    e("s_mov_b32 exec_hi, 0")
    e(f"ds_write_b64 v5, v[{T+6}:{T+7}] offset:{L_Z + 64}")
    e("s_mov_b64 exec, -1")
    e("v_bfe_u32 v5, v0, 2, 1")
    e("v_mul_u32_u24 v5, 160, v5")
    e("v_lshl_add_u32 v5, v1, 3, v5")
    e("v_lshrrev_b32 v6, 3, v2")
    e("v_lshl_add_u32 v5, v6, 2, v5")
    e(f"v_add_u32 v5, s{t0}, v5")
    e(f"v_and_b32 v8, 1, v0")
    e(f"v_mov_b32 v{T+8}, 0xffff")
    e(f"v_mov_b32 v{T+9}, 0xffff0000")
    e("v_cmp_eq_u32 vcc, 1, v8")
    nop(2)
    e(f"v_cndmask_b32 v{T+8}, v{T+8}, v{T+9}, vcc")
    e("v_bfe_u32 v8, v0, 1, 1")
    e("v_cmp_eq_u32 vcc, 0, v8")
    nop(2)
    e(f"v_cndmask_b32 v6, 0, v{T+8}, vcc")
    e(f"v_cndmask_b32 v7, v{T+8}, 0, vcc")
    e("s_waitcnt lgkmcnt(0)")
    for k in range(5):
        e(f"ds_read_b32 v{T+k}, v5 offset:{L_Z + 32*k}")
    e("v_lshrrev_b32 v8, 3, v2")
    e("v_lshlrev_b32 v8, 10, v8")
    e("v_bfe_u32 v9, v0, 2, 1")
    e("v_lshl_add_u32 v8, v9, 8, v8")
    e("v_and_b32 v9, 1, v1")
    e("v_lshl_add_u32 v8, v9, 7, v8")
    e("v_and_b32 v9, 3, v0")
    e("v_lshl_add_u32 v8, v9, 2, v8")
    e(f"s_lshl_b32 s{t0}, s{sAW}, 11")
    e(f"v_add_u32 v8, s{t0}, v8")
    e("s_waitcnt lgkmcnt(0)")
    BB = 80
    for k in range(5):
        e(f"v_and_b32 v{BB+2*k}, v{T+k}, v6")
        e(f"v_and_b32 v{BB+2*k+1}, v{T+k}, v7")
    YA = 96
    nop(1)

    def gemv(st2):
        for k in range(5):
            r = WR + 20 * st2 + 4 * k
            part = 0 if k < 2 else 1
            first = k in (0, 2)
            a = YA + 16 * st2 + 8 * part
            e(f"v_mfma_f32_16x16x16_bf16 v[{a}:{a+3}], v[{r}:{r+1}], v[{BB+2*k}:{BB+2*k+1}], " + ("0" if first else f"v[{a}:{a+3}]"))
            e(f"v_mfma_f32_16x16x16_bf16 v[{a+4}:{a+7}], v[{r+2}:{r+3}], v[{BB+2*k}:{BB+2*k+1}], " + ("0" if first else f"v[{a+4}:{a+7}]"))

    def ywrite(st2):
        for part in range(2):
            for hi in range(2):
                for r in range(4):
                    e(f"ds_write_b32 v8, v{YA + 16*st2 + 8*part + 4*hi + r} offset:{L_YW + 16384*st2 + 512*part + (8*r + 4*hi)*4}")
    gemv(0)
    e(f"s_cmp_eq_u32 s{sDD}, 1")
    e("s_cbranch_scc0 L_nodd1")
    gemv(1)
    e("L_nodd1:")
    nop(8)
    e("s_mov_b32 exec_lo, 0x00ff00ff")
    e("s_mov_b32 exec_hi, 0xff00ff00")
    ywrite(0)
    e(f"s_cmp_eq_u32 s{sDD}, 1")
    e("s_cbranch_scc0 L_nodd2")
    ywrite(1)
    e("L_nodd2:")
    e("s_mov_b64 exec, -1")
    e("s_waitcnt lgkmcnt(0)")
    e("s_barrier")
    e(f"s_lshr_b32 s{t0}, s{sAW}, 2")
    e(f"s_cmp_gt_u32 s{t0}, s{sDD}")
    e("s_cbranch_scc1 L_nopub")
    e(f"s_and_b32 s{t1}, s{sAW}, 1")
    e(f"s_bfe_u32 s{t2}, s{sAW}, 0x10001")
    e(f"s_lshl_b32 s{t3}, s{t0}, 14")
    e(f"s_lshl_b32 s{t4}, s{t2}, 9"); e(f"s_add_u32 s{t3}, s{t3}, s{t4}")
    e(f"s_lshl_b32 s{t4}, s{t1}, 8"); e(f"s_add_u32 s{t3}, s{t3}, s{t4}")
    e("v_lshlrev_b32 v5, 2, v0")
    e(f"v_add_u32 v5, s{t3}, v5")
    for k in range(16):
        e(f"ds_read_b32 v{64+k}, v5 offset:{L_YW + 1024*k}")
    e(f"s_cmp_eq_u32 s{t0}, 0")
    e(f"s_cselect_b32 s{t3}, s{sJ}, 8")
    e(f"s_mul_i32 s{t4}, s{t1}, 9"); e(f"s_add_u32 s{t3}, s{t3}, s{t4}")
    e(f"s_lshl_b32 s{t3}, s{t3}, 5"); e(f"s_add_u32 s{t3}, s{t3}, s{sH}")
    e(f"s_lshl_b32 s{t3}, s{t3}, 1"); e(f"s_add_u32 s{t3}, s{t3}, s{t2}")
    e(f"s_lshl_b32 s{t3}, s{t3}, 9"); e(f"s_add_u32 s{t3}, s{t3}, {WS_YP}")
    e("v_lshlrev_b32 v5, 3, v0")
    e("s_waitcnt lgkmcnt(0)")
    for st_ in (1, 2, 4, 8):
        for k in range(0, 16, 2 * st_):
            e(f"v_add_f32 v{64+k}, v{64+k}, v{64+k+st_}")
    e("v_add_u32 v64, 0x80, v64")
    e(f"v_bfi_b32 v64, v3, s{sT8}, v64")
    e(f"v_mov_b32 v65, s{sT32}")
    e(f"buffer_store_dwordx2 v[64:65], v5, s[{rWS}:{rWS+3}], s{t3} offen sc1")
    nop(2)
    e("L_nopub:")
    if stamps:
        e(f"s_cmp_lg_u32 s{sAW}, 0")
        e("s_cbranch_scc1 L_ns5")
        stamp(5)
        e("L_ns5:")
    e("s_cmp_ge_u32 s2, 18")
    e("s_cbranch_scc1 L_end")
    e("s_cmp_ge_u32 s2, 9")
    e(f"s_cselect_b32 s{t1}, 1, 0")
    e(f"s_mul_i32 s{t2}, s{t1}, 9"); e(f"s_sub_u32 s{t2}, s2, s{t2}")
    e(f"s_lshl_b32 s{t4}, s2, 7")
    srd(rC, sX, None, 2304)
    srd(rD, sOUT, None, 2304)
    e("v_lshlrev_b32 v6, 1, v0")
    e(f"buffer_load_ushort v7, v6, s[{rC}:{rC+3}], s{t4} offen")
    e(f"s_lshl_b32 s{t3}, s2, 5")
    e(f"s_lshl_b32 s{t0}, s{sAW}, 2"); e(f"s_add_u32 s{t3}, s{t3}, s{t0}")
    e(f"s_lshl_b32 s{t3}, s{t3}, 10"); e(f"s_add_u32 s{t3}, s{t3}, {WS_YP}")
    e("v_lshlrev_b32 v5, 3, v0")
    e(f"s_mov_b32 s{sTMO}, {POLL_LIMIT}")
    e("L_h2poll:")
    for k in range(8):
        e(f"buffer_load_dwordx2 v[{64+2*k}:{65+2*k}], v5, s[{rWS}:{rWS+3}], s{t3} offen offset:{512*k} sc1")
    e(f"v_mov_b32 v{T}, 0")
    e("s_waitcnt vmcnt(0)")
    for k in range(8):
        lo, hi = 64 + 2 * k, 65 + 2 * k
        e(f"v_xor_b32 v{T+1}, s{sT8}, v{lo}")
        e(f"v_xor_b32 v{T+2}, s{sT32}, v{hi}")
        e(f"v_and_or_b32 v{T+1}, v{T+1}, v3, v{T+2}")
        e(f"v_or_b32 v{T}, v{T}, v{T+1}")
    e(f"v_cmp_ne_u32 vcc, 0, v{T}")
    e("s_cbranch_vccz L_h2done")
    e(f"s_sub_u32 s{sTMO}, s{sTMO}, 1")
    e(f"s_cmp_eq_u32 s{sTMO}, 0")
    e("s_cbranch_scc0 L_h2poll")
    e("L_h2done:")
    for k in range(8):
        e(f"v_and_b32 v{64+2*k}, v{T+15}, v{64+2*k}")
    e("v_add_f32 v64, v64, v68"); e("v_add_f32 v72, v72, v76"); e("v_add_f32 v64, v64, v72")
    e("v_add_f32 v66, v66, v70"); e("v_add_f32 v74, v74, v78"); e("v_add_f32 v65, v66, v74")
    e(f"s_lshl_b32 s{t0}, s{sAW}, 9")
    e(f"v_add_u32 v5, s{t0}, v5")
    e(f"ds_write_b64 v5, v[64:65] offset:{L_R}")
    e("s_waitcnt lgkmcnt(0)")
    e("s_barrier")
    e(f"s_cmp_lg_u32 s{sAW}, 0")
    e("s_cbranch_scc1 L_end")
    for k in range(8):
        e(f"ds_read_b64 v[{64+2*k}:{65+2*k}], v5 offset:{L_R + 512*k}")
    e("v_lshlrev_b32 v7, 16, v7")
    e("s_waitcnt lgkmcnt(0)")
    for st_ in (1, 2, 4):
        for k in range(0, 8, 2 * st_):
            e(f"v_add_f32 v{64+2*k}, v{64+2*k}, v{64+2*(k+st_)}")
            e(f"v_add_f32 v{65+2*k}, v{65+2*k}, v{65+2*(k+st_)}")
    e("v_cvt_pk_bf16_f32 v66, v64, v65")
    e("v_lshlrev_b32 v64, 16, v66"); e("v_and_b32 v65, 0xffff0000, v66")
    e("v_add_f32 v64, v64, v7")
    e("v_cvt_pk_bf16_f32 v64, v64, v64")
    e("v_lshlrev_b32 v64, 16, v64")
    e("v_add_f32 v64, v64, v65")
    e("v_cvt_pk_bf16_f32 v64, v64, v64")
    e(f"buffer_store_short v64, v6, s[{rD}:{rD+3}], s{t4} offen")
    e("s_cmp_lg_u32 s2, 0")
    e("s_cbranch_scc1 L_nobump")
    e(f"v_mov_b32 v66, s{sT32}"); e(f"v_mov_b32 v67, s{sEH}")
    e("s_mov_b64 exec, 1")
    e(f"buffer_store_dwordx2 v[66:67], v{vZ}, s[{rWS}:{rWS+3}], 0 offen sc1")
    e("s_mov_b64 exec, -1")
    e("L_nobump:")
    stamp(6)
    e("L_end:")
    e("s_endpgm")
    e('.section .rodata,"a"')
    e(".p2align 6")
    e(f".amdhsa_kernel {KN}")
    e(f"  .amdhsa_next_free_vgpr {NVGPR}")
    e("  .amdhsa_next_free_sgpr 96")
    e(f"  .amdhsa_accum_offset {NVGPR}")
    e("  .amdhsa_group_segment_fixed_size 0")
    e("  .amdhsa_kernarg_size 96")
    e("  .amdhsa_user_sgpr_count 2")
    e("  .amdhsa_user_sgpr_kernarg_segment_ptr 1")
    e("  .amdhsa_system_sgpr_workgroup_id_x 1")
    e(".end_amdhsa_kernel")
    return "\n".join(x for x in L if x is not None) + "\n"


if __name__ == "__main__":
    import argparse
    ap = argparse.ArgumentParser()
    ap.add_argument("out")
    ap.add_argument("--stamps", action="store_true")
    ap.add_argument("--xcd_local", action="store_true")
    ap.add_argument("--early_w", action="store_true")
    a = ap.parse_args()
    open(a.out, "w").write(gen(stamps=a.stamps, xcd_local=a.xcd_local, early_w=a.early_w))
```
